```python
import torch

def _softmax(x, axis=-1):
    return torch.softmax(x, dim=axis)

def _gelu(x):
    return torch.nn.functional.gelu(x, approximate='tanh')

def _silu(x):
    return torch.nn.functional.silu(x)

def _sigmoid(x):
    return torch.sigmoid(x)

def _layernorm(x, axis=-1, eps=1e-05):
    m = x.mean(dim=axis, keepdim=True)
    v = x.var(dim=axis, keepdim=True, unbiased=False)
    return (x - m) / torch.sqrt(v + eps)

def _scatter_add(tgt, idx, src, axis=0):
    return tgt.clone().index_add_(axis, idx, src)

def _segment_sum(src, seg, n):
    out = torch.zeros((n,) + src.shape[1:], dtype=src.dtype)
    return out.index_add_(0, seg, src)

def _pad(x, pw):
    flat = tuple((v for pair in reversed(pw) for v in pair))
    return torch.nn.functional.pad(x, flat)
kernel_name = 'adaLN_cond__mha_block_cached__glu_gated_swiglu__decode'

def setup_inputs():

    _w = lambda a: (lambda t: t.to(torch.bfloat16) if t.is_floating_point() else t)(torch.as_tensor(a))

    def _A_setup():
        B, Sq, D = (1, 1, 512)
        H, Sk, Dh = (32, 65536, 128)
        return {'x': _w((lambda *s: torch.randn(*s, dtype=torch.bfloat16) * 0.1)(B, Sq, D)), 'k_cache': _w((lambda *s: torch.randn(*s, dtype=torch.bfloat16) * 1.6)(B, H, Sk, Dh)), 'v_cache': _w((lambda *s: torch.randn(*s, dtype=torch.bfloat16) * 3.2)(B, H, Sk, Dh)), 'wq': _w((lambda *s: torch.randn(*s, dtype=torch.bfloat16) * 1.6)(D, H * Dh) * D ** (-0.5)), 'wo': _w((lambda *s: torch.randn(*s, dtype=torch.bfloat16) * 3.2)(H * Dh, D) * (H * Dh) ** (-0.5))}
    _A_in = _A_setup()

    def _B_setup():
        B, S, D, F = (1, 1, 512, 1792)
        return {'x': _w((lambda *s: torch.randn(*s, dtype=torch.bfloat16) * 0.1)(B, S, D)), 'w1': _w((lambda *s: torch.randn(*s, dtype=torch.bfloat16) * 3.2)(D, F) * (2.0 / D) ** 0.5), 'w3': _w((lambda *s: torch.randn(*s, dtype=torch.bfloat16) * 3.2)(D, F) * (2.0 / D) ** 0.5), 'w2': _w((lambda *s: torch.randn(*s, dtype=torch.bfloat16) * 3.2)(F, D) * (2.0 / F) ** 0.5)}
    _B_in = _B_setup()
    return {'A_x': _A_in['x'], 'A_k_cache': _A_in['k_cache'], 'A_v_cache': _A_in['v_cache'], 'A_wq': _A_in['wq'], 'A_wo': _A_in['wo'], 'B_x': _B_in['x'], 'B_w1': _B_in['w1'], 'B_w3': _B_in['w3'], 'B_w2': _B_in['w2'], 'c': _w((lambda *s: torch.randn(*s, dtype=torch.bfloat16) * 0.2)(1, 512) * 8.0), 'w_mod': _w((lambda *s: torch.randn(*s, dtype=torch.bfloat16) * 0.2)(512, 6 * 512) * 512 ** (-0.5) * 8.0)}

def reference(A_x, A_k_cache, A_v_cache, A_wq, A_wo, B_x, B_w1, B_w3, B_w2, c, w_mod):

    def _A_ref(x, k_cache, v_cache, wq, wo):
        B, Sq, D = x.shape
        H, Dh = (32, 128)
        q = (lambda x, *d: x.permute(*d))((x @ wq).reshape(B, Sq, H, Dh), 0, 2, 1, 3)
        scores = torch.einsum('bhqd,bhkd->bhqk', q, k_cache) * Dh ** (-0.5)
        p = _softmax(scores, axis=-1)
        o = torch.einsum('bhqk,bhkd->bhqd', p, v_cache)
        return (lambda x, *d: x.permute(*d))(o, 0, 2, 1, 3).reshape(B, Sq, H * Dh) @ wo

    def _B_ref(x, w1, w3, w2):
        gate = torch.einsum('bsd,df->bsf', x, w1)
        up = torch.einsum('bsd,df->bsf', x, w3)
        h = _silu(gate) * up
        out = torch.einsum('bsf,fd->bsd', h, w2)
        return out
    x = A_x
    mod = (_silu(c) @ w_mod).reshape(c.shape[0], 6, 1, -1)
    sa, ca, ga, sb, cb, gb = (mod[:, 0].clone(), mod[:, 1].clone(), mod[:, 2].clone(), mod[:, 3].clone(), mod[:, 4].clone(), mod[:, 5].clone())
    h = _layernorm(x, axis=-1) * (1 + ca) + sa
    x = x + ga * _A_ref(h, A_k_cache, A_v_cache, A_wq, A_wo)
    h = _layernorm(x, axis=-1) * (1 + cb) + sb
    x = x + gb * _B_ref(h, B_w1, B_w3, B_w2)
    return x
```

```python
import re
TRANS = ('v_exp_f32','v_log_f32','v_rcp_f32','v_rsq_f32','v_sqrt_f32','v_sin_f32','v_cos_f32','v_rcp_iflag_f32')
def regs_of(op):
    op = op.strip()
    op = re.sub(r'^-', '', op); op = re.sub(r'^\|(.*)\|$', r'\1', op); op = re.sub(r'^abs\((.*)\)$', r'\1', op)
    m = re.fullmatch(r'([vsa])(\d+)', op)
    if m: return {(m.group(1), int(m.group(2)))}
    m = re.fullmatch(r'([vsa])\[(\d+):(\d+)\]', op)
    if m: return {(m.group(1), i) for i in range(int(m.group(2)), int(m.group(3))+1)}
    if op == 'vcc': return {('s','vcc')}
    if op in ('vcc_lo','vcc_hi'): return {('s','vcc')}
    if op == 'exec': return {('s','exec')}
    if op == 'm0': return {('s','m0')}
    return set()
class Ins:
    def __init__(self, text):
        self.text = text
        t = text.split(';')[0].strip()
        parts = t.split(None, 1)
        self.mn = parts[0]
        rest = parts[1] if len(parts) > 1 else ''
        ops = []; cur=''; depth=0
        for ch in rest:
            if ch in '[(': depth+=1
            if ch in '])': depth-=1
            if ch==',' and depth==0: ops.append(cur.strip()); cur=''
            else: cur+=ch
        if cur.strip(): ops.append(cur.strip())
        self.mods = ''
        if ops:
            sp = ops[-1].split(None,1)
            if len(sp)>1: ops[-1]=sp[0]; self.mods=sp[1]
        self.ops = ops
        mn = self.mn
        self.valu = mn.startswith('v_')
        self.salu = mn.startswith('s_')
        self.vmem = mn.startswith(('buffer_','global_','flat_','scratch_'))
        self.ds = mn.startswith('ds_')
        self.dpp = mn.endswith('_dpp') or 'row_' in self.mods or 'quad_perm' in self.mods
        self.sdwa = mn.endswith('_sdwa')
        self.trans = mn.replace('_e32','').replace('_e64','') in TRANS
        self.dot = mn.startswith('v_dot')
        self.mfma = mn.startswith('v_mfma')
        self.permlane = mn.startswith('v_permlane')
        self.rdlane = mn.startswith(('v_readlane','v_readfirstlane'))
        self.wrlane = mn.startswith('v_writelane')
        R = [regs_of(o) for o in ops]
        self.w=set(); self.r=set(); self.srcC=set(); self.lanesel=set(); self.stdata=set()
        if self.valu:
            if self.permlane:
                self.w = R[0]|R[1]; self.r = R[0]|R[1]
            elif mn.startswith(('v_add_co','v_sub_co','v_subrev_co','v_addc_co','v_subb_co','v_div_scale','v_mad_u64')):
                self.w = R[0]|R[1]
                for x in R[2:]: self.r |= x
            else:
                self.w = set(R[0])
                for x in R[1:]: self.r |= x
                if mn.startswith(('v_fmac','v_dot2c','v_pk_fmac','v_writelane')) or self.dpp or self.sdwa:
                    self.r |= R[0]
                if mn.startswith('v_dot2c'): self.srcC = set(R[0])
                elif self.dot or self.mfma: self.srcC = set(R[3]) if len(R)>3 else set()
                if mn.startswith('v_cmpx'): self.w |= {('s','exec')}
                if mn.startswith('v_div_fmas'): self.r |= {('s','vcc')}
                if mn.startswith(('v_readlane','v_writelane')): self.lanesel = set(R[2])
        elif self.vmem:
            isstore = '_store' in mn; isatomic = '_atomic' in mn
            lds = ' lds' in (' '+self.mods) or '_lds_' in mn
            if isstore or lds or (isatomic and 'sc0' not in self.mods):
                for x in R: self.r |= x
            elif isatomic and mn.startswith('buffer'):
                self.w=set(R[0])
                for x in R: self.r |= x
            else:
                self.w = set(R[0])
                for x in R[1:]: self.r |= x
            if lds: self.r |= {('s','m0')}
            if isstore and ('x3' in mn or 'x4' in mn):
                self.stdata = set(R[0]) if mn.startswith('buffer') else set(R[1])
            self.ldsdma = lds
        elif self.ds:
            if mn.startswith(('ds_write','ds_add','ds_max','ds_min','ds_or')) and '_rtn' not in mn:
                for x in R: self.r |= x
            else:
                self.w=set(R[0])
                for x in R[1:]: self.r |= x
        elif self.salu:
            if mn.startswith(('s_cmp','s_cbranch','s_branch','s_waitcnt','s_nop','s_barrier','s_endpgm','s_sleep','s_setprio','s_bitcmp')):
                for x in R: self.r |= x
            else:
                if R: self.w=set(R[0])
                for x in R[1:]: self.r |= x
                if 'saveexec' in mn: self.w |= {('s','exec')}
        self.ws = 1
        if mn=='s_nop': self.ws = int(ops[0],0)+1
def mfma_passes(mn):
    if '32x32x16' in mn or '32x32x8' in mn: return 8
    if '16x16x32' in mn or '16x16x16' in mn: return 4
    if '4x4x4' in mn: return 2
    raise Exception('unknown mfma '+mn)
def need(p, c):
    n = 0
    pv = {x for x in p.w if x[0] in 'va'}; ps = {x for x in p.w if x[0]=='s'}
    if p.valu and not p.mfma:
        if c.valu and c.dpp and pv & c.r: n=max(n,2)
        if c.rdlane and pv & c.r: n=max(n,1)
        if c.permlane and pv & c.r: n=max(n,2)
        if p.trans and c.valu and not c.trans and pv & c.r: n=max(n,1)
        if p.trans and (c.vmem or c.ds) and pv & c.r: n=max(n,1)
        if p.sdwa and c.valu and pv & (c.r|c.w): n=max(n,1)
        if c.mfma and pv & c.r: n=max(n,2)
        if ps:
            if c.valu and ps & c.lanesel: n=max(n,4)
            if c.valu and ps & c.r: n=max(n,2)
            if c.mn.startswith('v_div_fmas') and ('s','vcc') in ps: n=max(n,4)
            if c.vmem and ps & c.r: n=max(n,5)
            if ('s','exec') in ps:
                if c.dpp: n=max(n,5)
                if c.rdlane or c.wrlane or c.permlane or c.mfma: n=max(n,4)
            if c.salu and ps & c.r: n=max(n,1)
    if p.dot:
        if pv & (c.r|c.w):
            if c.mn==p.mn:
                other = (c.r - c.srcC) if not c.mn.startswith('v_dot2c') else set().union(*[regs_of(o) for o in c.ops[1:]])
                if pv & other: n=max(n,3)
                elif pv & c.w and not (pv & c.srcC): n=max(n,3)
            else: n=max(n,3)
    if p.mfma:
        k = mfma_passes(p.mn); tab={2:(2,4,5,1),4:(0,6,8,3),8:(0,10,12,7)}[k]
        if c.mfma:
            if pv & c.srcC: n=max(n, tab[0] if c.srcC==pv and c.mn==p.mn else tab[1])
            if pv & (c.r - c.srcC): n=max(n,tab[2])
        elif pv & (c.r|c.w): n=max(n,tab[2])
        if c.valu and not c.mfma and p.srcC & c.w: n=max(n,tab[3])
    if p.vmem and p.stdata and p.stdata & c.w:
        n=max(n, 2 if c.valu else 1)
    if p.salu and ('s','m0') in p.w and c.vmem and getattr(c,'ldsdma',False): n=max(n,1)
    return n
class Emitter:
    def __init__(self):
        self.lines=[]; self.hist=[]; self.nops=0
    def raw(self, s): self.lines.append(s)
    def label(self, name):
        self.lines.append(name+':')
    def __call__(self, text):
        for t in text.split('\n'):
            t=t.strip()
            if not t: continue
            if t.startswith(';') : self.lines.append('    '+t); continue
            if t.endswith(':') or t.startswith('.'):
                self.lines.append(t); continue
            c = Ins(t)
            dist=0; pad=0
            for p in reversed(self.hist[-24:]):
                k = need(p,c)
                if k>dist: pad=max(pad,k-dist)
                dist+=p.ws
                if dist>=20: break
            while pad>0:
                k=min(pad,16)
                nop=Ins(f's_nop {k-1}'); self.hist.append(nop); self.lines.append(f'    s_nop {k-1}'); pad-=k; self.nops+=1
            self.hist.append(c); self.lines.append('    '+t)
    def fence(self, n=5):
        self(f's_nop {n-1}')
    def text(self): return '\n'.join(self.lines)+'\n'
def kd(name, vgpr, sgpr, accum=None):
    accum = accum or (min(vgpr,256)+3)//4*4
    return f""".section .rodata,"a"
.p2align 6
.amdhsa_kernel {name}
  .amdhsa_next_free_vgpr {vgpr}
  .amdhsa_next_free_sgpr {sgpr}
  .amdhsa_accum_offset {accum}
  .amdhsa_group_segment_fixed_size 0
  .amdhsa_kernarg_size 112
  .amdhsa_user_sgpr_count 2
  .amdhsa_user_sgpr_kernarg_segment_ptr 1
  .amdhsa_system_sgpr_workgroup_id_x 1
  .amdhsa_float_denorm_mode_32 3
.end_amdhsa_kernel
"""
```

```python
import sys
from emit import *
NAME='adaLN_cond__mha_block_cached__glu_gated_swiglu__decode'
HDR = open('cdna_kernels/'+NAME+'.s.ref').read().split('; Override launch')[0] if len(sys.argv)<3 else ''
WS_MOD=0x0; WS_Q=0x4000; WS_X1=0x6000; WS_PART=0x10000; WS_ATT=0x60000; WS_FFN=0x80000
L2E='0x3fb8aa3b'; SCALE='0x3db504f3'
E=Emitter()
def start(name, G):
    E.raw(f'.globl {name}'); E.raw('.p2align 8'); E.raw(f'.type {name},@function'); E.raw(f'{name}:')
    E.hist=[]
    E(f's_cmp_ge_u32 s2, {G}'); E(f's_cbranch_scc1 {name}_done')
def end(name):
    E(f'{name}_done:'); E('s_endpgm')
def srd(d, b, size, add=None):
    if add is None:
        E(f's_mov_b32 s{d}, s{b}'); E(f's_mov_b32 s{d+1}, s{b+1}')
    else:
        E(f's_add_u32 s{d}, s{b}, {add}'); E(f's_addc_u32 s{d+1}, s{b+1}, 0')
    E(f's_mov_b32 s{d+2}, {size}'); E(f's_mov_b32 s{d+3}, 0x20000')
def bfr(v):
    E(f'v_cvt_pk_bf16_f32 v{v}, v{v}, v{v}'); E(f'v_lshlrev_b32 v{v}, 16, v{v}')
def div(d, a, b, t0, t1):
    E(f'v_rcp_f32 v{t0}, v{b}'); E(f'v_mul_f32 v{t1}, v{a}, v{t0}')
    E(f'v_fma_f32 v{d}, -v{t1}, v{b}, v{a}'); E(f'v_fma_f32 v{d}, v{d}, v{t0}, v{t1}')
def silu(v, t0, t1, t2):
    E(f'v_mul_f32 v{t2}, 0xbfb8aa3b, v{v}'); E(f'v_exp_f32 v{t2}, v{t2}'); E(f'v_add_f32 v{t2}, 1.0, v{t2}')
    E(f'v_rcp_f32 v{t0}, v{t2}'); E(f'v_mul_f32 v{v}, v{v}, v{t0}')
    bfr(v)
def wavesum(v, s):
    for m in ('row_ror:8','row_ror:4','row_ror:2','row_ror:1'):
        E(f'v_add_f32_dpp v{v}, v{v}, v{v} {m} row_mask:0xf bank_mask:0xf')
    E(f'v_add_f32_dpp v{v}, v{v}, v{v} row_bcast:15 row_mask:0xa bank_mask:0xf')
    E(f'v_add_f32_dpp v{v}, v{v}, v{v} row_bcast:31 row_mask:0xc bank_mask:0xf')
    E(f'v_readlane_b32 s{s}, v{v}, 63')
XS=0; RED=4096; SCR=4096+8192
def blocksum(v, t, slot):
    wavesum(v, 40)
    E(f'v_mov_b32 v{v}, s40'); E(f'ds_write_b32 v3, v{v} offset:{SCR+slot*16}')
    E('s_waitcnt lgkmcnt(0)'); E('s_barrier')
    E(f'v_mov_b32 v{t}, 0'); E(f'ds_read_b128 v[{t+2}:{t+5}], v{t} offset:{SCR+slot*16}'); E('s_waitcnt lgkmcnt(0)')
    E(f'v_add_f32 v{v}, v{t+2}, v{t+3}'); E(f'v_add_f32 v{t}, v{t+4}, v{t+5}'); E(f'v_add_f32 v{v}, v{v}, v{t}')
def layernorm(a, b, slot):
    E(f'v_add_f32 v50, v{a}, v{b}'); blocksum(50, 52, slot)
    E('v_mul_f32 v50, 0x3b000000, v50')
    E(f'v_sub_f32 v58, v{a}, v50'); E(f'v_sub_f32 v59, v{b}, v50')
    E('v_mul_f32 v51, v58, v58'); E('v_fmac_f32 v51, v59, v59'); blocksum(51, 52, slot+1)
    E('v_mul_f32 v51, 0x3b000000, v51'); bfr(51); bfr(50)
    E('v_add_f32 v51, 0x3727c5ac, v51'); bfr(51); E('v_sqrt_f32 v51, v51'); bfr(51)
    for r in (a,b):
        E(f'v_sub_f32 v{r}, v{r}, v50'); bfr(r); div(r, r, 51, 52, 53); bfr(r)
def common():
    E('v_lshrrev_b32 v2, 6, v0'); E('v_lshlrev_b32 v3, 2, v2')
    E('v_and_b32 v1, 63, v0')
def gemv(srdn, soff, stride, K, xs, res):
    n=K//32
    E(f'v_mul_u32_u24 v8, {K//4}, v2'); E('v_lshrrev_b32 v9, 3, v1'); E('v_add_u32 v8, v8, v9')
    E(f'v_lshlrev_b32 v10, 2, v8')
    E(f's_mov_b32 s41, {stride}'); E('v_mul_lo_u32 v8, v8, s41'); E('v_and_b32 v9, 7, v1'); E('v_lshl_add_u32 v8, v9, 4, v8')
    for i in range(8): E(f'v_mov_b32 v{12+i}, 0')
    E(f's_mov_b32 s41, s{soff}')
    for i0 in range(0,n,4):
        m=min(4,n-i0)
        for i in range(m):
            E(f'buffer_load_dwordx4 v[{24+4*i}:{27+4*i}], v8, s[{srdn}:{srdn+3}], s41 offen'); E(f's_add_u32 s41, s41, {8*stride}')
            E(f'ds_read_b32 v{20+i}, v10 offset:{xs+(i0+i)*32}')
        E('s_waitcnt vmcnt(0) lgkmcnt(0)')
        for i in range(m):
            for d in range(4):
                r=24+4*i+d
                E(f'v_lshlrev_b32 v40, 16, v{r}'); E(f'v_and_b32 v41, 0xffff0000, v{r}')
                E(f'v_fmac_f32 v{12+2*d}, v40, v{20+i}'); E(f'v_fmac_f32 v{13+2*d}, v41, v{20+i}')
    E('s_barrier')
    E('v_lshrrev_b32 v8, 3, v0'); E('v_lshlrev_b32 v8, 8, v8'); E('v_lshl_add_u32 v8, v9, 5, v8')
    E(f'ds_write_b128 v8, v[12:15] offset:{RED}'); E(f'ds_write_b128 v8, v[16:19] offset:{RED+16}')
    E('s_waitcnt lgkmcnt(0)'); E('s_barrier')
    E('v_lshlrev_b32 v8, 2, v1')
    E(f'v_mov_b32 v{res}, 0')
    for r0 in range(0,32,8):
        for r in range(8): E(f'ds_read_b32 v{24+r}, v8 offset:{RED+(r0+r)*256}')
        E('s_waitcnt lgkmcnt(0)')
        for r in range(8): E(f'v_add_f32 v{res}, v{res}, v{24+r}')
def unpack(src, lo, hi):
    E(f'v_and_b32 v{hi}, 0xffff0000, v{src}'); E(f'v_lshlrev_b32 v{lo}, 16, v{src}')

launches=[]
E.raw('.amdgcn_target "amdgcn-amd-amdhsa--gfx950"'); E.raw('.text')
n='mod_kernel'; launches.append((n,48,256,16384)); start(n,48); common()
E('s_load_dwordx4 s[4:7], s[0:1], 72'); E('s_load_dwordx2 s[20:21], s[0:1], 104'); E('s_waitcnt lgkmcnt(0)')
srd(8,6,512*3072*2)
E('v_lshlrev_b32 v4, 2, v0'); E('global_load_dword v5, v4, s[4:5]'); E('s_waitcnt vmcnt(0)')
unpack(5,6,7); silu(6,50,51,52); silu(7,50,51,52)
E('v_lshlrev_b32 v4, 3, v0'); E(f'ds_write_b64 v4, v[6:7] offset:{XS}'); E('s_waitcnt lgkmcnt(0)'); E('s_barrier')
E('s_lshl_b32 s22, s2, 7')
gemv(8,22,6144,512,XS,48); bfr(48)
E('v_cmp_gt_u32 vcc, 64, v0'); E('s_and_saveexec_b64 s[30:31], vcc'); E(f's_cbranch_execz {n}_done')
E('s_lshl_b32 s22, s2, 8'); E('v_lshl_add_u32 v4, v0, 2, s22'); E(f'global_store_dword v4, v48, s[20:21] offset:{WS_MOD}')
end(n)
n='q_kernel'; launches.append((n,64,256,16384)); start(n,64); common()
E('s_load_dwordx2 s[4:5], s[0:1], 0'); E('s_load_dwordx2 s[6:7], s[0:1], 24'); E('s_load_dwordx2 s[20:21], s[0:1], 104'); E('s_waitcnt lgkmcnt(0)')
srd(8,6,512*4096*2)
E('v_lshlrev_b32 v4, 2, v0'); E('global_load_dword v5, v4, s[4:5]')
E('v_lshlrev_b32 v4, 3, v0'); E('global_load_dwordx2 v[62:63], v4, s[20:21]'); E('global_load_dwordx2 v[64:65], v4, s[20:21] offset:2048')
E('s_waitcnt vmcnt(0)')
unpack(5,6,7); layernorm(6,7,0)
for r,sa,ca in ((6,62,64),(7,63,65)):
    E(f'v_add_f32 v{ca}, 1.0, v{ca}'); bfr(ca); E(f'v_mul_f32 v{r}, v{r}, v{ca}'); bfr(r); E(f'v_add_f32 v{r}, v{r}, v{sa}'); bfr(r)
E(f'ds_write_b64 v4, v[6:7] offset:{XS}'); E('s_waitcnt lgkmcnt(0)'); E('s_barrier')
E('s_lshl_b32 s22, s2, 7')
gemv(8,22,8192,512,XS,48); E('v_cvt_pk_bf16_f32 v48, v48, v48')
E('v_cmp_gt_u32 vcc, 64, v0'); E('s_and_saveexec_b64 s[30:31], vcc'); E(f's_cbranch_execz {n}_done')
E('s_lshl_b32 s22, s2, 7'); E(f's_add_u32 s22, s22, {WS_Q}'); E('v_lshl_add_u32 v4, v0, 1, s22'); E(f'global_store_short v4, v48, s[20:21]')
end(n)
n='attn_kernel'; launches.append((n,256,256,16384)); start(n,256); common()
E('s_load_dwordx4 s[4:7], s[0:1], 8'); E('s_load_dwordx2 s[20:21], s[0:1], 104')
E('v_readfirstlane_b32 s16, v2'); E('s_lshr_b32 s17, s2, 3'); E('s_and_b32 s18, s2, 7')
E('v_and_b32 v18, 15, v1'); E('v_lshlrev_b32 v18, 4, v18'); E('v_lshlrev_b32 v19, 4, v1')
E('s_waitcnt lgkmcnt(0)')
E('s_lshl_b32 s19, s17, 24'); srd(8,4,'0x1000000','s19'); srd(12,6,'0x1000000','s19')
E('s_lshl_b32 s19, s17, 8'); E(f's_add_u32 s19, s19, {WS_Q}'); E('v_add_u32 v18, s19, v18')
E('global_load_dwordx4 v[4:7], v18, s[20:21]')
E('s_lshl_b32 s23, s18, 8'); E('s_add_u32 s23, s23, s16'); E('s_lshl_b32 s23, s23, 13')
KB=40; VB=72
def ldk(j, so):
    E(f'buffer_load_dwordx4 v[{KB+4*j}:{KB+4*j+3}], v19, s[8:11], {so[j>>2]} offen offset:{(j&3)*1024} nt')
def ldv(j, so):
    E(f'buffer_load_dwordx4 v[{VB+4*j}:{VB+4*j+3}], v19, s[12:15], {so[j>>2]} offen offset:{(j&3)*1024} nt')
E('s_add_u32 s24, s23, 4096')
so=('s23','s24')
for j in range(8): ldk(j,so)
for j in range(8): ldv(j,so)
for i in range(8): E(f'v_mov_b32 v{8+i}, 0')
E('v_mov_b32 v16, 0xff800000'); E('v_mov_b32 v17, 0')
E(f's_mov_b32 s26, {L2E}'); E(f's_mov_b32 s27, {SCALE}'); E('s_mov_b32 s28, 0xffff0000')
E('s_mov_b32 s25, 64')
E('attn_loop:')
E('s_add_u32 s23, s23, 32768');
E('s_cmp_eq_u32 s25, 1'); E('s_cselect_b32 s23, 0x7f000000, s23')
E('s_add_u32 s24, s23, 4096')
S=20
keymap={}
def tile():
    for j in range(8):
        E('s_waitcnt vmcnt(15)')
        E(f'v_dot2_f32_bf16 v{S+j}, v{KB+4*j}, v4, 0')
        for d in range(1,4): E(f'v_dot2_f32_bf16 v{S+j}, v{KB+4*j+d}, v{4+d}, v{S+j}')
        ldk(j,so)
    for j in range(4): E(f'v_add_f32_dpp v{S+j}, v{S+j}, v{S+j} row_ror:8 row_mask:0xf bank_mask:0x3')
    for j in range(4): E(f'v_add_f32_dpp v{S+j}, v{S+j+4}, v{S+j+4} row_ror:8 row_mask:0xf bank_mask:0xc')
    A=S; B=S+2
    E(f'v_add_f32_dpp v{A}, v{S}, v{S} row_half_mirror row_mask:0xf bank_mask:0x5')
    E(f'v_add_f32_dpp v{B}, v{S+2}, v{S+2} row_half_mirror row_mask:0xf bank_mask:0x5')
    E(f'v_add_f32_dpp v{A}, v{S+1}, v{S+1} row_half_mirror row_mask:0xf bank_mask:0xa')
    E(f'v_add_f32_dpp v{B}, v{S+3}, v{S+3} row_half_mirror row_mask:0xf bank_mask:0xa')
    km={0:('A',0),1:('A',1),4:('A',2),5:('A',3),2:('B',0),3:('B',1),6:('B',2),7:('B',3)}
    for qp in ('[1,0,3,2]','[2,3,0,1]'):
        for r in (A,B): E(f'v_add_f32_dpp v{r}, v{r}, v{r} quad_perm:{qp} row_mask:0xf bank_mask:0xf')
    E(f'v_cvt_pk_bf16_f32 v28, v{A}, v{B}'); E(f'v_lshlrev_b32 v{A}, 16, v28'); E(f'v_and_b32 v{B}, s28, v28')
    E(f'v_mul_f32 v{A}, s27, v{A}'); E(f'v_mul_f32 v{B}, s27, v{B}')
    E(f'v_cvt_pk_bf16_f32 v28, v{A}, v{B}'); E(f'v_lshlrev_b32 v{A}, 16, v28'); E(f'v_and_b32 v{B}, s28, v28')
    E(f'v_max3_f32 v29, v{A}, v{B}, v16')
    E('v_max_f32_dpp v29, v29, v29 row_ror:4 row_mask:0xf bank_mask:0xf')
    E('v_max_f32_dpp v29, v29, v29 row_ror:8 row_mask:0xf bank_mask:0xf')
    E('v_sub_f32 v30, v16, v29'); E(f'v_sub_f32 v{A}, v{A}, v29'); E(f'v_sub_f32 v{B}, v{B}, v29')
    E('v_mul_f32 v30, s26, v30'); E(f'v_mul_f32 v{A}, s26, v{A}'); E(f'v_mul_f32 v{B}, s26, v{B}')
    E('v_exp_f32 v30, v30'); E(f'v_exp_f32 v{A}, v{A}'); E(f'v_exp_f32 v{B}, v{B}')
    E('v_mov_b32 v16, v29')
    E(f'v_fma_f32 v17, v17, v30, v{A}'); E(f'v_add_f32 v17, v17, v{B}')
    E(f'v_cvt_pk_bf16_f32 v32, v{A}, 0'); E(f'v_cvt_pk_bf16_f32 v33, 0, v{A}')
    E(f'v_cvt_pk_bf16_f32 v34, v{B}, 0'); E(f'v_cvt_pk_bf16_f32 v35, 0, v{B}')
    for i in range(8): E(f'v_mul_f32 v{8+i}, v{8+i}, v30')
    for j in range(8):
        E('s_waitcnt vmcnt(15)')
        r,b=km[j]; p=32 if r=='A' else 34
        for d in range(4):
            E(f'v_dot2c_f32_bf16_dpp v{8+2*d}, v{p}, v{VB+4*j+d} row_newbcast:{4*b} row_mask:0xf bank_mask:0xf')
            E(f'v_dot2c_f32_bf16_dpp v{9+2*d}, v{p+1}, v{VB+4*j+d} row_newbcast:{4*b} row_mask:0xf bank_mask:0xf')
        ldv(j,so)
tile()
E('s_sub_u32 s25, s25, 1'); E('s_cmp_lg_u32 s25, 0'); E('s_cbranch_scc1 attn_loop')
E('v_add_f32_dpp v17, v17, v17 row_ror:4 row_mask:0xf bank_mask:0xf')
E('v_add_f32_dpp v17, v17, v17 row_ror:8 row_mask:0xf bank_mask:0xf')
E('v_lshrrev_b32 v20, 4, v0'); E('v_mul_u32_u24 v20, 544, v20'); E('v_and_b32 v21, 15, v0'); E('v_lshl_add_u32 v21, v21, 5, v20')
E('ds_write_b128 v21, v[8:11]'); E('ds_write_b128 v21, v[12:15] offset:16'); E('ds_write_b64 v20, v[16:17] offset:512')
E('s_waitcnt lgkmcnt(0)'); E('s_barrier')
E('v_cmp_gt_u32 vcc, 128, v0'); E('s_and_saveexec_b64 s[30:31], vcc'); E(f's_cbranch_execz {n}_done')
E('s_waitcnt vmcnt(0)')
E('v_mov_b32 v20, 0'); E('v_lshlrev_b32 v21, 2, v0')
for r in range(16):
    E(f'ds_read_b64 v[{40+2*r}:{41+2*r}], v20 offset:{r*544+512}'); E(f'ds_read_b32 v{72+r}, v21 offset:{r*544}')
    if r%4==3: E('s_waitcnt lgkmcnt(0)')
E('v_max3_f32 v22, v40, v42, v44')
for r in range(3,15,2): E(f'v_max3_f32 v22, v22, v{40+2*r}, v{42+2*r}')
E('v_max_f32 v22, v22, v70')
E('v_mov_b32 v23, 0'); E('v_mov_b32 v24, 0')
for r in range(16):
    E(f'v_sub_f32 v25, v{40+2*r}, v22'); E('v_mul_f32 v25, s26, v25'); E('v_exp_f32 v25, v25')
    E(f'v_fmac_f32 v23, v25, v{41+2*r}'); E(f'v_fmac_f32 v24, v25, v{72+r}')
E('s_lshl_b32 s19, s2, 10'); E(f's_add_u32 s19, s19, {WS_PART}'); E('v_add_u32 v21, s19, v21'); E('v_mov_b32 v20, s19')
E('global_store_dword v21, v24, s[20:21]'); E('global_store_dwordx2 v20, v[22:23], s[20:21] offset:512')
end(n)
n='wo_kernel'; launches.append((n,256,256,16384)); start(n,256); common()
E('s_load_dwordx2 s[6:7], s[0:1], 32'); E('s_load_dwordx2 s[20:21], s[0:1], 104'); E('s_waitcnt lgkmcnt(0)')
srd(8,6,4096*512*2)
E('s_lshr_b32 s17, s2, 3'); E('s_and_b32 s18, s2, 7'); E(f's_mov_b32 s26, {L2E}')
E('s_lshl_b32 s19, s17, 13'); E(f's_add_u32 s19, s19, {WS_PART}')
E('v_and_b32 v4, 127, v0'); E('v_lshl_add_u32 v5, v4, 2, s19'); E('v_mov_b32 v6, s19')
for r in range(8):
    E(f'global_load_dwordx2 v[{40+2*r}:{41+2*r}], v6, s[20:21] offset:512'); E(f'global_load_dword v{72+r}, v5, s[20:21]')
    E('v_add_u32 v5, 1024, v5'); E('v_add_u32 v6, 1024, v6')
E('s_waitcnt vmcnt(0)')
E('v_max3_f32 v22, v40, v42, v44'); E('v_max3_f32 v22, v22, v46, v48'); E('v_max3_f32 v22, v22, v50, v52'); E('v_max_f32 v22, v22, v54')
E('v_mov_b32 v23, 0'); E('v_mov_b32 v24, 0')
for r in range(8):
    E(f'v_sub_f32 v25, v{40+2*r}, v22'); E('v_mul_f32 v25, s26, v25'); E('v_exp_f32 v25, v25')
    E(f'v_fmac_f32 v23, v25, v{41+2*r}'); E(f'v_fmac_f32 v24, v25, v{72+r}')
div(26,24,23,27,28); bfr(26)
E('v_lshlrev_b32 v4, 2, v4'); E(f'ds_write_b32 v4, v26 offset:{XS}'); E('s_waitcnt lgkmcnt(0)'); E('s_barrier')
E('s_lshl_b32 s22, s17, 17'); E('s_lshl_b32 s23, s18, 7'); E('s_add_u32 s22, s22, s23')
gemv(8,22,1024,128,XS,48)
E('v_cmp_gt_u32 vcc, 64, v0'); E('s_and_saveexec_b64 s[30:31], vcc'); E(f's_cbranch_execz {n}_done')
E('s_lshl_b32 s22, s2, 8'); E(f's_add_u32 s22, s22, {WS_ATT}'); E('v_lshl_add_u32 v4, v0, 2, s22'); E(f'global_store_dword v4, v48, s[20:21]')
end(n)
n='ffn_kernel'; launches.append((n,28,256,16384)); start(n,28); common()
E('s_load_dwordx2 s[4:5], s[0:1], 0'); E('s_load_dwordx4 s[44:47], s[0:1], 48'); E('s_load_dwordx2 s[48:49], s[0:1], 64'); E('s_load_dwordx2 s[20:21], s[0:1], 104'); E('s_waitcnt lgkmcnt(0)')
srd(8,44,512*1792*2); srd(12,46,512*1792*2); srd(32,48,1792*512*2)
E('v_lshlrev_b32 v4, 2, v0'); E('global_load_dword v5, v4, s[4:5]')
E('v_lshlrev_b32 v4, 3, v0'); E(f'v_add_u32 v8, {WS_MOD+4096}, v4')
E('global_load_dwordx2 v[62:63], v8, s[20:21]'); E('global_load_dwordx2 v[64:65], v8, s[20:21] offset:2048')
E('v_add_u32 v8, 4096, v8'); E('global_load_dwordx2 v[66:67], v8, s[20:21]')
E(f'v_add_u32 v8, {WS_ATT}, v4')
for r in range(32):
    E(f'global_load_dwordx2 v[{70+2*r}:{71+2*r}], v8, s[20:21]'); E('v_add_u32 v8, 2048, v8')
E('s_waitcnt vmcnt(0)')
for r in range(1,32):
    E(f'v_add_f32 v70, v70, v{70+2*r}'); E(f'v_add_f32 v71, v71, v{71+2*r}')
unpack(5,6,7)
for r,at,ga in ((6,70,62),(7,71,63)):
    bfr(at); E(f'v_mul_f32 v{at}, v{at}, v{ga}'); bfr(at); E(f'v_add_f32 v{r}, v{r}, v{at}'); bfr(r)
E(f'v_add_u32 v8, {WS_X1}, v4'); E('global_store_dwordx2 v8, v[6:7], s[20:21]')
layernorm(6,7,0)
for r,sa,ca in ((6,64,66),(7,65,67)):
    E(f'v_add_f32 v{ca}, 1.0, v{ca}'); bfr(ca); E(f'v_mul_f32 v{r}, v{r}, v{ca}'); bfr(r); E(f'v_add_f32 v{r}, v{r}, v{sa}'); bfr(r)
E(f'ds_write_b64 v4, v[6:7] offset:{XS}'); E('s_waitcnt lgkmcnt(0)'); E('s_barrier')
E('s_lshl_b32 s22, s2, 7')
gemv(8,22,3584,512,XS,48); bfr(48)
gemv(12,22,3584,512,XS,49); bfr(49)
silu(48,50,51,52); E('v_mul_f32 v48, v48, v49'); bfr(48)
E('v_lshlrev_b32 v4, 2, v1'); E(f'ds_write_b32 v4, v48 offset:2048'); E('s_waitcnt lgkmcnt(0)'); E('s_barrier')
E('s_lshl_b32 s22, s2, 16'); E('s_lshl_b32 s23, s2, 11'); E(f's_add_u32 s23, s23, {WS_FFN}')
for cg in range(8):
    gemv(32,22,1024,64,2048,48)
    E('v_lshl_add_u32 v4, v1, 2, s23'); E(f'global_store_dword v4, v48, s[20:21] offset:{cg*256}')
    E('s_add_u32 s22, s22, 128')
end(n)
n='fin_kernel'; launches.append((n,1,256,0)); start(n,1)
E('s_load_dwordx2 s[4:5], s[0:1], 88'); E('s_load_dwordx2 s[20:21], s[0:1], 104'); E('s_waitcnt lgkmcnt(0)')
E('v_lshlrev_b32 v4, 3, v0'); E(f'v_add_u32 v8, {WS_MOD+5*2048}, v4'); E('global_load_dwordx2 v[62:63], v8, s[20:21]')
E(f'v_add_u32 v8, {WS_X1}, v4'); E('global_load_dwordx2 v[6:7], v8, s[20:21]')
E(f'v_add_u32 v8, {WS_FFN}, v4')
for r in range(28):
    E(f'global_load_dwordx2 v[{70+2*r}:{71+2*r}], v8, s[20:21]'); E('v_add_u32 v8, 2048, v8')
E('s_waitcnt vmcnt(0)')
for r in range(1,28):
    E(f'v_add_f32 v70, v70, v{70+2*r}'); E(f'v_add_f32 v71, v71, v{71+2*r}')
for r,at,ga in ((6,70,62),(7,71,63)):
    bfr(at); E(f'v_mul_f32 v{at}, v{at}, v{ga}'); bfr(at); E(f'v_add_f32 v{r}, v{r}, v{at}')
E('v_cvt_pk_bf16_f32 v6, v6, v7'); E('v_lshlrev_b32 v4, 2, v0'); E('global_store_dword v4, v6, s[4:5]')
end(n)
out = HDR + ''.join(f'; @launch kernel={k} grid=({g},1,1) block=({b},1,1) lds={l}\n' for k,g,b,l in launches) + E.text()
for k,g,b,l in launches: out += kd(k, 104 if k=='attn_kernel' else 136, 56)
open(sys.argv[1],'w').write(out)
print('nops', E.nops)
```
